```python
import torch

def _softmax(x, axis=-1):
    return torch.softmax(x, dim=axis)
def _gelu(x):
    return torch.nn.functional.gelu(x, approximate="tanh")
def _silu(x):
    return torch.nn.functional.silu(x)
def _sigmoid(x):
    return torch.sigmoid(x)
def _layernorm(x, axis=-1, eps=1e-5):
    m = x.mean(dim=axis, keepdim=True)
    v = x.var(dim=axis, keepdim=True, unbiased=False)
    return (x - m) / torch.sqrt(v + eps)
def _scatter_add(tgt, idx, src, axis=0):
    return tgt.clone().index_add_(axis, idx, src)
def _segment_sum(src, seg, n):
    out = torch.zeros((n,) + src.shape[1:], dtype=src.dtype)
    return out.index_add_(0, seg, src)
def _pad(x, pw):
    flat = tuple(v for pair in reversed(pw) for v in pair)
    return torch.nn.functional.pad(x, flat)

kernel_name = 'parallel_sum__ssm_conv_s5__mixer_channel_mlp__prompt'

def setup_inputs():

    _w = (lambda a: (lambda t: t.to(torch.bfloat16) if t.is_floating_point() else t)(torch.as_tensor(a)))
    def _A_setup():
        B, S, D = 1, 2048, 512
        P = D
        Lambda_re = -0.5 * (lambda _x: torch.exp(torch.as_tensor(_x)))((lambda *s: torch.randn(*s, dtype=torch.bfloat16) * 0.2)(P))
        Lambda_im = (lambda *s: torch.randn(*s, dtype=torch.bfloat16) * 0.8)(P) * 1.0
        B_re = (lambda *s: torch.randn(*s, dtype=torch.bfloat16) * 0.2)(P, D) * (D ** -0.5)
        B_im = (lambda *s: torch.randn(*s, dtype=torch.bfloat16) * 0.2)(P, D) * (D ** -0.5)
        C_re = (lambda *s: torch.randn(*s, dtype=torch.bfloat16) * 0.2)(D, P) * (P ** -0.5)
        C_im = (lambda *s: torch.randn(*s, dtype=torch.bfloat16) * 0.2)(D, P) * (P ** -0.5)
        log_dt = (lambda *s: torch.randn(*s, dtype=torch.bfloat16) * 0.2)(P) * 0.3 - 2.0
        Dskip = (lambda *s: torch.randn(*s, dtype=torch.bfloat16) * 0.05)(D)
        return {
            "x": _w((lambda *s: torch.randn(*s, dtype=torch.bfloat16) * 0.05)(B, S, D)),
            "Lambda_re": _w(Lambda_re),
            "Lambda_im": _w(Lambda_im),
            "B_re": _w(B_re),
            "B_im": _w(B_im),
            "C_re": _w(C_re),
            "C_im": _w(C_im),
            "log_dt": _w(log_dt),
            "Dskip": _w(Dskip),
        }
    _A_in = _A_setup()

    def _B_setup():
        B, S, D, F = 1, 2048, 512, 1792
        return {
            "x": _w((lambda *s: torch.randn(*s, dtype=torch.bfloat16) * 0.05)(B, S, D)),
            "w1": _w((lambda *s: torch.randn(*s, dtype=torch.bfloat16) * 1.6)(D, F) * (D ** -0.5)),
            "b1": _w((lambda *s: torch.randn(*s, dtype=torch.bfloat16) * 0.8)(F)),
            "w2": _w((lambda *s: torch.randn(*s, dtype=torch.bfloat16) * 0.05)(F, D) * (F ** -0.5)),
            "b2": _w((lambda *s: torch.randn(*s, dtype=torch.bfloat16) * 0.05)(D)),
        }
    _B_in = _B_setup()

    return {
        "A_x": _A_in["x"],
        "A_Lambda_re": _A_in["Lambda_re"],
        "A_Lambda_im": _A_in["Lambda_im"],
        "A_B_re": _A_in["B_re"],
        "A_B_im": _A_in["B_im"],
        "A_C_re": _A_in["C_re"],
        "A_C_im": _A_in["C_im"],
        "A_log_dt": _A_in["log_dt"],
        "A_Dskip": _A_in["Dskip"],
        "B_x": _B_in["x"],
        "B_w1": _B_in["w1"],
        "B_b1": _B_in["b1"],
        "B_w2": _B_in["w2"],
        "B_b2": _B_in["b2"],
    }

def reference(A_x, A_Lambda_re, A_Lambda_im, A_B_re, A_B_im, A_C_re, A_C_im, A_log_dt, A_Dskip, B_x, B_w1, B_b1, B_w2, B_b2):
    def _A_ref(x, Lambda_re, Lambda_im, B_re, B_im, C_re, C_im, log_dt, Dskip):
        Bsz, L, H = x.shape
        Lam = Lambda_re + 1j * Lambda_im
        Bmat = B_re + 1j * B_im
        Cmat = C_re + 1j * C_im
        dt = torch.exp(log_dt)
        Lam_bar = torch.exp(dt * Lam)
        B_bar = ((Lam_bar - 1.0) / Lam)[:, None] * Bmat
        Bu = torch.einsum("bld,pd->blp", x + 0j, B_bar)
        h = torch.zeros_like(Bu[:, 0, :])
        hs = []
        for t in range(L):
            h = Lam_bar[None, :] * h + Bu[:, t, :]
            hs.append(h)
        hseq = torch.stack(hs, 1)
        y = 2.0 * torch.einsum("blp,dp->bld", hseq, Cmat).real + x * Dskip[None, None, :]
        return y

    def _B_ref(x, w1, b1, w2, b2):
        y = _layernorm(x, axis=-1)
        h = _gelu(torch.einsum("bsd,df->bsf", y, w1) + b1)
        return torch.einsum("bsf,fd->bsd", h, w2) + b2

    x = A_x
    xn = _layernorm(x, axis=-1)
    return x + _A_ref(xn, A_Lambda_re, A_Lambda_im, A_B_re, A_B_im, A_C_re, A_C_im, A_log_dt, A_Dskip) + _B_ref(xn, B_w1, B_b1, B_w2, B_b2)
```

```python
import re

REG_RE = re.compile(r'(?<![\w.])([vas])(?:(\d+)|\[(\d+):(\d+)\])(?![\w])')

def regs_of(op):
    out = []
    op = op.strip()
    for m in REG_RE.finditer(op):
        k = m.group(1)
        if m.group(2) is not None: out.append((k, int(m.group(2))))
        else: out += [(k, i) for i in range(int(m.group(3)), int(m.group(4)) + 1)]
    if re.search(r'\bvcc\b', op): out += [('s', 'vcc')]
    if re.search(r'\bexec\b', op): out += [('s', 'exec')]
    if re.search(r'\bm0\b', op): out += [('s', 'm0')]
    return out

def split_ops(s):
    ops, depth, cur = [], 0, ''
    for ch in s:
        if ch in '[(': depth += 1
        if ch in '])': depth -= 1
        if ch == ',' and depth == 0: ops.append(cur.strip()); cur = ''
        else: cur += ch
    if cur.strip(): ops.append(cur.strip())
    return ops

TRANS = ('v_exp_f32', 'v_log_f32', 'v_rcp_f32', 'v_rsq_f32', 'v_sqrt_f32', 'v_sin_f32', 'v_cos_f32')

class Ins:
    __slots__ = ('text', 'mn', 'rd', 'wr', 'cls', 'tok', 'passes', 'srcA', 'srcB', 'srcC', 'wide', 'data', 'meta', 'pos', 'done')
    def __init__(self, text, tok=None, meta=None):
        self.text = text; self.tok = tok; self.meta = meta; self.pos = None; self.done = None
        t = text.split(';')[0].strip()
        parts = t.split(None, 1)
        mn = self.mn = parts[0]
        ops = split_ops(parts[1]) if len(parts) > 1 else []
        self.rd, self.wr = [], []
        self.passes = 0; self.srcA = self.srcB = self.srcC = []; self.wide = False; self.data = []
        R = [regs_of(o) for o in ops]
        base = re.sub(r'_(e32|e64|sdwa|dpp)$', '', mn)
        if mn.endswith(':') or mn.startswith('.'):
            self.cls = 'label'
        elif mn.startswith('v_mfma'):
            self.cls = 'mfma'
            self.wr = R[0]; self.srcA, self.srcB, self.srcC = R[1], R[2], R[3]
            self.rd = R[1] + R[2] + R[3]
            self.passes = 8 if ('32x32x16' in mn or '32x32x8' in mn) else 4 if '16x16x32' in mn else 2 if '4x4x4' in mn else None
            assert self.passes, mn
        elif mn.startswith('ds_'):
            self.cls = 'lds'
            if mn.startswith('ds_read') or mn.startswith('ds_bpermute') or mn.startswith('ds_swizzle'):
                self.wr = R[0]; self.rd = sum(R[1:], [])
            else:
                self.rd = sum(R, [])
        elif mn.startswith('buffer_') or mn.startswith('global_'):
            self.cls = 'vmem'
            if mn in ('buffer_wbl2', 'buffer_inv'): pass
            elif re.search(r'\blds\b', t) or '_lds_' in mn:
                self.rd = sum(R, []) + [('s', 'm0')]
            elif '_load_' in mn:
                self.wr = R[0]; self.rd = sum(R[1:], [])
                if 'd16' in mn: self.rd += R[0]
            elif '_store_' in mn:
                self.rd = sum(R, [])
                self.data = R[0] if mn.startswith('buffer_') else R[1]
                self.wide = mn.endswith('x4') or mn.endswith('x3')
            else:
                raise Exception('vmem? ' + t)
        elif mn.startswith('s_load') or mn in ('s_memtime', 's_memrealtime'):
            self.cls = 'smem'; self.wr = R[0]; self.rd = sum(R[1:], [])
        elif mn in ('s_waitcnt', 's_nop', 's_barrier', 's_endpgm', 's_setprio', 's_sleep', 's_branch') or mn.startswith('s_cbranch'):
            self.cls = 'ctl'
            if 'vcc' in mn: self.rd = [('s', 'vcc')]
        elif mn.startswith('s_cmp') or mn.startswith('s_bitcmp'):
            self.cls = 'salu'; self.rd = sum(R, [])
        elif mn.startswith('s_'):
            self.cls = 'salu'; self.wr = R[0]; self.rd = sum(R[1:], [])
            if 'saveexec' in mn: self.wr = self.wr + [('s', 'exec')]
            if mn in ('s_addk_i32', 's_mulk_i32'): self.rd += R[0]
        elif mn.startswith('v_'):
            self.cls = 'valu'
            if base.startswith('v_permlane') and 'swap' in base:
                self.wr = R[0] + R[1]; self.rd = R[0] + R[1]
            elif base in ('v_add_co_u32', 'v_addc_co_u32', 'v_sub_co_u32'):
                self.wr = R[0] + R[1]; self.rd = sum(R[2:], [])
            else:
                self.wr = R[0]; self.rd = sum(R[1:], [])
                if base in ('v_fmac_f32', 'v_dot2c_f32_bf16', 'v_writelane_b32') or mn.endswith('_dpp'): self.rd = self.rd + R[0]
        else:
            raise Exception('unknown instr ' + t)
    @property
    def is_trans(self): return self.mn.replace('_e32', '').replace('_e64', '') in TRANS
    @property
    def is_dot(self): return self.mn.startswith('v_dot')
    def states(self):
        if self.cls == 'label': return 0
        if self.mn == 's_nop': return int(self.text.split(';')[0].split()[1], 0) + 1
        return 1

class WaitVM:
    def __init__(self, tok): self.tok = tok
class WaitLG:
    def __init__(self, tok=None): self.tok = tok
class Opaque:
    def __init__(self, text, rd='', wr='', pad=True): self.text = text; self.rd = regs_of(rd); self.wr = regs_of(wr); self.pad = pad

def I(text, tok=None, meta=None): return Ins(text, tok, meta)
def L(text):
    return [Ins(x.strip()) for x in text.strip().split('\n') if x.split(';')[0].strip()]

def ov(a, b): return bool(set(a) & set(b))

def need_states(p, c):
    n = 0
    pv = [r for r in p.wr if r[0] in 'va']; ps = [r for r in p.wr if r[0] == 's']
    if p.cls == 'mfma':
        T = {2: 0, 4: 1, 8: 2}[p.passes]
        if c.cls == 'mfma':
            if ov(p.wr, c.srcA + c.srcB): n = max(n, (5, 8, 12)[T])
            if ov(p.wr, c.srcC):
                if p.wr == c.srcC and p.mn == c.mn: n = max(n, (2, 0, 0)[T])
                else: n = max(n, (4, 6, 10)[T])
            elif ov(p.wr, c.wr): n = max(n, (5, 8, 12)[T])
        elif c.cls in ('valu', 'vmem', 'lds'):
            if ov(p.wr, c.rd + c.wr): n = max(n, (5, 8, 12)[T])
        if c.cls == 'valu' and ov(p.srcC, c.wr): n = max(n, (1, 3, 7)[T])
    if p.cls == 'valu':
        if c.cls == 'mfma' and ov(pv, c.rd): n = max(n, 3 if p.is_dot else 2)
        if p.is_dot and c.cls in ('valu', 'vmem', 'lds') and ov(pv, c.rd + c.wr):
            same_acc = c.mn == p.mn and not ov(pv, sum([regs_of(o) for o in split_ops(c.text.split(';')[0].split(None, 1)[1])[1:3]], []))
            if not same_acc: n = max(n, 3)
        if c.cls == 'vmem' and ov(ps, c.rd): n = max(n, 5)
        if c.cls == 'valu':
            if ov(ps, c.rd): n = max(n, 4 if ('readlane' in c.mn or 'writelane' in c.mn) else 2)
            if ('permlane' in c.mn or c.mn.endswith('_dpp')) and ov(pv, c.rd): n = max(n, 2)
            if ('readlane' in c.mn or 'readfirstlane' in c.mn) and ov(pv, c.rd): n = max(n, 1)
            if p.is_trans and not c.is_trans and ov(pv, c.rd): n = max(n, 1)
            if (p.mn.endswith('_sdwa') or ('op_sel' in p.text and not p.mn.startswith('v_pk_'))) and ov(pv, c.rd + c.wr): n = max(n, 1)
        if c.cls in ('salu', 'ctl', 'smem') and ov(ps, c.rd): n = max(n, 4)
        if p.is_trans and c.cls in ('vmem', 'lds') and ov(pv, c.rd): n = max(n, 1)
    if p.cls == 'vmem' and p.wide and ov(p.data, c.wr): n = max(n, 2)
    if p.cls == 'salu' and ('s', 'm0') in p.wr and c.cls == 'vmem' and ('s', 'm0') in c.rd: n = max(n, 1)
    return n

def check_lds(out):
    bars = [o.pos for o in out if isinstance(o, Ins) and o.mn == 's_barrier']
    hist = {}
    def sep(a, b, need_bar):
        if a.cls == 'lds' and b.cls == 'lds' and not need_bar: return True
        if a.done is None or a.done > b.pos: return False
        return (not need_bar) or any(a.done <= q < b.pos for q in bars)
    for o in out:
        if isinstance(o, Ins) and isinstance(o.meta, tuple) and o.meta[0] in 'wr':
            k, units, priv = o.meta
            for u in (units if isinstance(units, (list, tuple)) else [units]):
                h = hist.setdefault(u, [])
                for a in h:
                    if a.meta[0] == 'r' and k == 'r': continue
                    if a.meta[0] == 'w' and k == 'w' and a.tok is not None and a.tok == o.tok: continue
                    if a.meta[0] == 'w' and k == 'w' and a.cls == 'lds' and o.cls == 'lds': continue
                    assert sep(a, o, not (priv and a.meta[2])), ('LDS order violation', u, a.text, a.tok, o.text, o.tok)
                if k == 'r': assert any(a.meta[0] == 'w' for a in h), ('read before write', u, o.text)
                h.append(o)

def finalize(prog, verbose=False):
    out = []
    lq, vq, sq = [], [], []
    done_tok = set()
    nnop = 0
    def hazard_pad(c):
        nonlocal nnop
        dist, need = 0, 0
        for p in reversed(out):
            if isinstance(p, str): break
            k = need_states(p, c) - dist
            if k > need: need = k
            dist += p.states()
            if dist >= 20: break
        while need > 0:
            k = min(need, 16); out.append(Ins(f's_nop {k-1}')); need -= k; nnop += 1
    def emit_wait(vm=None, lg=None):
        parts = []
        if vm is not None:
            vm = min(vm, 63)
            if vm < len(vq):
                for o in vq[:len(vq) - vm]: done_tok.add(o.tok); o.done = len(out)
                del vq[:len(vq) - vm]; parts.append(f'vmcnt({vm})')
        if lg is not None:
            lg = min(lg, 15)
            if lg < len(lq) or (lg == 0 and sq):
                for o in lq[:len(lq) - lg]: done_tok.add(o.tok); o.done = len(out)
                del lq[:len(lq) - lg]
                if lg == 0: sq.clear()
                parts.append(f'lgkmcnt({lg})')
        if parts:
            last = out[-1] if out else None
            if isinstance(last, Ins) and last.mn == 's_waitcnt' and last.meta == 'auto' and not any(x.split('(')[0] in last.text for x in parts):
                out[-1] = Ins(last.text + ' ' + ' '.join(parts), meta='auto')
            else:
                out.append(Ins('s_waitcnt ' + ' '.join(parts), meta='auto'))
    def dep_wait(touch):
        vm = lg = None
        for i, o in enumerate(vq):
            if ov(o.wr, touch): vm = len(vq) - 1 - i
        for i, o in enumerate(lq):
            if ov(o.wr, touch): lg = len(lq) - 1 - i
        if any(ov(o.wr, touch) for o in sq): lg = 0
        emit_wait(vm, lg)
    for x in prog:
        if isinstance(x, WaitVM):
            if x.tok is None: emit_wait(vm=0); continue
            idx = [i for i, o in enumerate(vq) if o.tok == x.tok]
            if idx: emit_wait(vm=len(vq) - 1 - idx[-1])
            else: assert x.tok in done_tok, ('unknown vm token', x.tok)
        elif isinstance(x, WaitLG):
            if x.tok is None: emit_wait(lg=0); continue
            idx = [i for i, o in enumerate(lq) if o.tok == x.tok]
            if idx: emit_wait(lg=len(lq) - 1 - idx[-1])
            else: assert x.tok in done_tok, ('unknown lg token', x.tok)
        elif isinstance(x, Opaque):
            dep_wait(x.rd + x.wr)
            if x.pad:
                fake = Ins('v_mov_b32 v0, v0'); fake.rd = x.rd; fake.wr = x.wr; fake.mn = 'v_readlane_permlane'
                hazard_pad(fake)
                fake.cls = 'vmem'; hazard_pad(fake)
            blk = Ins('.opaque'); blk.text = x.text.strip('\n'); out.append(blk)
            if x.wr and x.pad:
                ph = Ins('.phantom'); ph.text = ''; ph.cls = 'valu'; ph.wr = x.wr; ph.mn = 'v_phantom'; ph.meta = 'phantom'; out.append(ph)
        else:
            if x.mn == 's_waitcnt':
                m = re.search(r'vmcnt\((\d+)\)', x.text); n = re.search(r'lgkmcnt\((\d+)\)', x.text)
                emit_wait(int(m.group(1)) if m else None, int(n.group(1)) if n else None); continue
            dep_wait(x.rd + x.wr)
            hazard_pad(x)
            x.pos = len(out)
            out.append(x)
            if x.cls == 'lds': lq.append(x)
            elif x.cls == 'vmem': vq.append(x)
            elif x.cls == 'smem': sq.append(x)
    check_lds(out)
    lines = []
    for o in out:
        if isinstance(o, str): lines.append(o)
        elif o.meta == 'phantom': continue
        elif o.cls == 'label': lines.append(o.text)
        else: lines.append('  ' + o.text)
    if verbose:
        from collections import Counter
        c = Counter(o.cls for o in out if isinstance(o, Ins))
        print('instr classes', dict(c), 'auto nops', nnop)
    return '\n'.join(lines) + '\n'

_old_states = Ins.states
def _states(self):
    if self.meta == 'phantom': return 0
    return _old_states(self)
Ins.states = _states

class RegAlloc:
    def __init__(self, kind, lo, hi):
        self.kind = kind; self.free = [True] * hi; self.lo = lo; self.hi = hi; self.high = lo
        for i in range(lo): self.free[i] = False
    def alloc(self, n=1, align=None):
        align = align or (1 if n == 1 else 2 if n < 4 else 4)
        i = (self.lo + align - 1) // align * align
        while i + n <= self.hi:
            if all(self.free[i:i + n]):
                for j in range(i, i + n): self.free[j] = False
                self.high = max(self.high, i + n)
                return Reg(self.kind, i, n)
            i += align
        raise Exception(f'out of {self.kind} regs (need {n})')
    def release(self, *rs):
        for r in rs:
            if isinstance(r, (list, tuple)): self.release(*r); continue
            for j in range(r.i, r.i + r.n):
                assert not self.free[j], ('double free', r); self.free[j] = True

class Reg:
    def __init__(self, kind, i, n): self.kind, self.i, self.n = kind, i, n
    def __str__(self): return f'{self.kind}{self.i}' if self.n == 1 else f'{self.kind}[{self.i}:{self.i + self.n - 1}]'
    __repr__ = __str__
    def __getitem__(self, k):
        if isinstance(k, slice):
            a = k.start or 0; b = k.stop if k.stop is not None else self.n
            assert 0 <= a < b <= self.n
            return Reg(self.kind, self.i + a, b - a)
        assert 0 <= k < self.n, (self, k)
        return Reg(self.kind, self.i + k, 1)
```

```python
import sys, os
sys.path.insert(0, os.path.dirname(os.path.abspath(__file__)))
from asmlib import *

NAME = "parallel_sum__ssm_conv_s5__mixer_channel_mlp__prompt_kernel"
HB, PB, EB, FB, TB = 0, 16 << 20, 32 << 20, 33 << 20, 34 << 20
U = 4096
SCR_CS, SCR_R1, SCR_EX = 38 * U, 38 * U + 3072, 39 * U
SPIN = 200000

def f32(x):
    import struct
    return hex(struct.unpack('<I', struct.pack('<f', x))[0])

def gen(opt):
    P = []
    V = RegAlloc('v', 1, 256); A = RegAlloc('a', 0, 256)
    def e(t, tok=None, meta=None): P.append(I(t, tok, meta))
    def E(t): P.extend(L(t))
    stamps = []
    def stamp(name):
        if opt.get('stamps'):
            k = len(stamps); stamps.append(name)
            P.append(Opaque(f"  s_memtime s[{80+0}:{81}]\n  s_waitcnt lgkmcnt(0)\n  v_writelane_b32 {vstamp}, s80, {k}", pad=False))
    sX, sBre, sBim, sW1, sW2, sCre, sCim, sWS, sOut, sE, sDbg = [f's[{4*i}:{4*i+3}]' for i in range(1, 12)]
    s_c, s_s, s_kq, s_nq, s_wm, s_odd, s_wm1k, s_wm4k, s_rot, s_flip, s_fast, s_t0, s_t1, s_t2, s_so, s_so2, s_xcc, s_ct = [f's{i}' for i in range(60, 78)]
    lane, r_, h_ = V.alloc(), V.alloc(), V.alloc()
    vstamp = V.alloc()
    t = [V.alloc() for _ in range(8)]
    P.append(Opaque("  s_cmp_ge_u32 s2, 256\n  s_cbranch_scc1 L_end", pad=False))
    E(f"""
    s_load_dwordx2 s[4:5], s[0:1], 0
    s_load_dwordx2 s[16:17], s[0:1], 80
    s_load_dwordx2 s[8:9], s[0:1], 24
    s_load_dwordx2 s[12:13], s[0:1], 32
    s_getpc_b64 s[78:79]
    v_lshlrev_b32 {t[0]}, 7, v0
    """)
    pf = V.alloc()
    e(f"v_min_u32 {t[0]}, L_end-{NAME}-64, {t[0]}")
    e(f"global_load_dword {pf}, {t[0]}, s[78:79]")
    stamp('start')
    E(f"""
    v_lshrrev_b32 {t[1]}, 6, v0
    v_and_b32 {lane}, 63, v0
    s_mov_b32 s6, 0x200000
    v_readfirstlane_b32 {s_wm}, {t[1]}
    s_mov_b32 s7, 0x20000
    s_mov_b32 s10, 0x80000
    s_mov_b32 s11, 0x20000
    s_mov_b32 s14, 0x80000
    s_mov_b32 s15, 0x20000
    s_mov_b32 s18, {512*3584}
    s_mov_b32 s19, 0x20000
    """)
    mp = opt.get('map', 'a')
    if mp == 'a':
        E(f"""
        s_and_b32 {s_t0}, s2, 7
        s_lshr_b32 {s_t1}, s2, 7
        s_lshl_b32 {s_c}, {s_t0}, 1
        s_add_u32 {s_c}, {s_c}, {s_t1}
        s_bfe_u32 {s_s}, s2, 0x40003
        """)
    elif mp == 'lin':
        E(f"""
        s_lshr_b32 {s_c}, s2, 4
        s_and_b32 {s_s}, s2, 15
        """)
    E(f"""
    s_lshr_b32 {s_kq}, {s_s}, 2
    s_and_b32 {s_nq}, {s_s}, 3
    s_and_b32 {s_odd}, {s_s}, 1
    s_lshl_b32 {s_wm1k}, {s_wm}, 10
    s_lshl_b32 {s_wm4k}, {s_wm}, 12
    """)
    rot = opt.get('rot', 'none')
    if rot == 'none': e(f"s_mov_b32 {s_rot}, 0")
    elif rot == 's': e(f"s_and_b32 {s_rot}, {s_s}, 6")
    elif rot == 'sx': E(f"s_add_u32 {s_rot}, {s_s}, {s_c}\ns_and_b32 {s_rot}, {s_rot}, 6")
    if opt.get('flip'): e(f"s_and_b32 {s_flip}, {s_c}, 1")
    else: e(f"s_mov_b32 {s_flip}, 0")
    vx = [V.alloc() for _ in range(4)]; vb = V.alloc(); vw1 = [V.alloc() for _ in range(4)]
    a_, sl = t[2], t[3]
    E(f"""
    v_lshrrev_b32 {a_}, 3, {lane}
    v_and_b32 {sl}, 7, {lane}
    v_lshrrev_b32 {t[4]}, 1, {a_}
    v_xor_b32 {sl}, {sl}, {t[4]}
    v_lshlrev_b32 {sl}, 4, {sl}
    v_and_b32 {t[4]}, 4, {a_}
    v_and_b32 {t[5]}, 3, {a_}
    v_lshl_add_u32 {t[4]}, {t[4]}, 2, {t[5]}
    v_lshl_add_u32 {t[4]}, {t[4]}, 10, {sl}
    s_lshl_b32 {s_t0}, {s_c}, 17
    s_lshl_b32 {s_t1}, {s_wm}, 15
    s_add_u32 {s_t0}, {s_t0}, {s_t1}
    v_add_u32 {vx[0]}, {s_t0}, {t[4]}
    v_xor_b32 {vx[1]}, 64, {vx[0]}
    v_add_u32 {vx[1]}, 3072, {vx[1]}
    v_add_u32 {vx[2]}, 6144, {vx[0]}
    v_add_u32 {vx[3]}, 6144, {vx[1]}
    """)
    E(f"""
    s_lshl_b32 {s_t0}, {s_s}, 15
    s_lshl_b32 {s_t1}, {s_wm}, 13
    s_add_u32 {s_t0}, {s_t0}, {s_t1}
    s_and_b32 {s_t1}, {s_wm}, 1
    s_lshl_b32 {s_t1}, {s_t1}, 6
    v_xor_b32 {t[5]}, {s_t1}, {sl}
    v_lshl_add_u32 {t[5]}, {a_}, 10, {t[5]}
    v_add_u32 {vb}, {s_t0}, {t[5]}
    """)
    vcrow = V.alloc()
    E(f"""
    s_lshl_b32 {s_t1}, {s_wm}, 13
    v_add_u32 {vcrow}, {s_t1}, {t[5]}
    """)
    g_, tt, pc = t[2], t[3], t[4]
    vseg = V.alloc()
    E(f"""
    v_lshrrev_b32 {g_}, 4, {lane}
    v_bfe_u32 {tt}, {lane}, 2, 2
    v_xor_b32 {vseg}, {tt}, {g_}
    v_and_b32 {pc}, 3, {lane}
    v_lshlrev_b32 {pc}, 4, {pc}
    v_lshl_add_u32 {t[5]}, {vseg}, 6, {pc}
    s_lshl_b32 {s_t0}, {s_odd}, 5
    v_add_u32 {t[5]}, {s_t0}, {t[5]}
    s_mul_i32 {s_t1}, {s_odd}, 192
    s_sub_u32 {s_t1}, 192, {s_t1}
    v_and_b32 {t[6]}, 16, {pc}
    v_add_u32 {t[6]}, {s_t1}, {t[6]}
    v_cmp_eq_u32 vcc, 3, {vseg}
    v_cndmask_b32 {t[5]}, {t[5]}, {t[6]}, vcc
    v_mul_u32_u24 {t[6]}, 3584, {g_}
    s_mul_i32 {s_t0}, {s_wm}, {16*3584}
    s_mul_i32 {s_t1}, {s_s}, 224
    s_add_u32 {s_t0}, {s_t0}, {s_t1}
    v_add3_u32 {vw1[0]}, {t[5]}, {t[6]}, {s_t0}
    v_add_u32 {vw1[1]}, {4*3584-1024}, {vw1[0]}
    v_add_u32 {vw1[2]}, {2*(4*3584-1024)}, {vw1[0]}
    v_add_u32 {vw1[3]}, {3*(4*3584-1024)}, {vw1[0]}
    """)
    XU = lambda sl: 4 * sl; W1U = lambda sl: 12 + 4 * sl; BU = lambda sl: 24 + 2 * sl
    xnt = ' nt' if opt.get('xnt') else ''
    def dma_chunk(i):
        sl = i % 3; tok = f'c{i}'; o = []
        o += L(f"""
        s_xor_b32 {s_so}, {s_flip}, {i}
        s_add_u32 {s_so}, {s_so}, {s_rot}
        s_and_b32 {s_so}, {s_so}, 7
        s_mul_i32 {s_so2}, {s_so}, {64*3584}
        s_lshl_b32 {s_so}, {s_so}, 7
        s_add_u32 m0, {s_wm4k}, {XU(sl)*U}
        """)
        xs = list(range(XU(sl), XU(sl) + 4))
        for n in range(4): o.append(I(f"buffer_load_dwordx4 {vx[n]}, {sX}, {s_so} offen offset:{n*1024}{xnt} lds", tok, ('w', xs, True)))
        o.append(I(f"s_add_u32 m0, {s_wm1k}, {BU(sl)*U}"))
        o.append(I(f"buffer_load_dwordx4 {vb}, {sBre}, {s_so} offen lds", tok, ('w', BU(sl), False)))
        o.append(I(f"s_add_u32 m0, {s_wm1k}, {(BU(sl)+1)*U}"))
        o.append(I(f"buffer_load_dwordx4 {vb}, {sBim}, {s_so} offen lds", tok, ('w', BU(sl) + 1, False)))
        o.append(I(f"s_add_u32 m0, {s_wm4k}, {W1U(sl)*U}"))
        ws_ = list(range(W1U(sl), W1U(sl) + 4))
        for n in range(4): o.append(I(f"buffer_load_dwordx4 {vw1[n]}, {sW1}, {s_so2} offen offset:{n*1024} lds", tok, ('w', ws_, False)))
        return o
    P += dma_chunk(0)
    E(f"""
    s_load_dwordx2 s[20:21], s[0:1], 96
    s_load_dwordx2 s[24:25], s[0:1], 40
    s_load_dwordx2 s[28:29], s[0:1], 48
    s_load_dwordx2 s[32:33], s[0:1], 128
    s_load_dwordx2 s[36:37], s[0:1], 112
    s_load_dwordx2 s[44:45], s[0:1], 120
    s_load_dwordx4 s[48:51], s[0:1], 8
    s_load_dwordx4 s[52:55], s[0:1], 56
    s_load_dwordx2 s[56:57], s[0:1], 88
    s_load_dwordx2 s[58:59], s[0:1], 104
    """)
    P += dma_chunk(1)
    E(f"""
    s_mov_b32 s22, {1792*1024}
    s_mov_b32 s23, 0x20000
    s_mov_b32 s26, 0x80000
    s_mov_b32 s27, 0x20000
    s_mov_b32 s30, 0x80000
    s_mov_b32 s31, 0x20000
    s_mov_b32 s34, {40<<20}
    s_mov_b32 s35, 0x20000
    s_mov_b32 s38, 0x400000
    s_mov_b32 s39, 0x20000
    s_mov_b32 s42, 4096
    s_mov_b32 s43, 0x20000
    s_mov_b32 s46, 256
    s_mov_b32 s47, 0x20000
    s_getreg_b32 {s_xcc}, hwreg(HW_REG_XCC_ID, 0, 4)
    s_lshl_b32 {s_ct}, {s_nq}, 2
    s_add_u32 {s_ct}, {s_ct}, {s_kq}
    v_and_b32 {r_}, 31, {lane}
    v_lshrrev_b32 {h_}, 5, {lane}
    s_lshl_b32 {s_t0}, {s_s}, 12
    s_add_u32 {s_t0}, {s_t0}, {EB}
    s_add_u32 s40, s32, {s_t0}
    s_addc_u32 s41, s33, 0
    """)
    vflag = V.alloc()
    veo = V.alloc()
    zz = V.alloc(2)
    E(f"""
    s_lshl_b32 {s_t0}, {s_c}, 4
    s_add_u32 {s_t0}, {s_t0}, {s_s}
    s_lshl_b32 {s_t0}, {s_t0}, 2
    s_add_u32 {s_t0}, {s_t0}, {s_wm}
    s_lshl_b32 {s_t0}, {s_t0}, 7
    s_add_u32 {s_t0}, {s_t0}, {FB}
    v_mov_b32 {vflag}, {s_t0}
    v_cmp_eq_u32 vcc, 0, {lane}
    v_mov_b32 {t[0]}, 0x7ffffff0
    v_cndmask_b32 {vflag}, {t[0]}, {vflag}, vcc
    v_mov_b32 {t[1]}, 0
    buffer_store_dword {t[1]}, {vflag}, {sWS}, 0 offen sc0 sc1
    s_sub_u32 {s_t1}, 15, {s_c}
    s_lshl_b32 {s_t1}, {s_t1}, 8
    v_lshl_add_u32 {veo}, {r_}, 3, {s_t1}
    s_cmp_eq_u32 {s_wm}, 3
    s_cselect_b32 {s_t2}, 1, 2
    v_cmp_eq_u32 vcc, {s_t2}, {h_}
    v_mov_b32 {zz[0]}, -1
    v_mov_b32 {zz[1]}, -1
    """)
    vei = V.alloc()
    E(f"""
    v_lshl_add_u32 {vei}, {h_}, 11, {veo}
    v_add_u32 {vei}, 256, {vei}
    v_cndmask_b32 {veo}, {t[0]}, {veo}, vcc
    """)
    e(f"buffer_store_dwordx2 {zz}, {veo}, {sE}, 0 offen sc0 sc1", 'init')
    lre, lim, ldt = V.alloc(), V.alloc(), V.alloc()
    wop = [V.alloc(2) for _ in range(6)]
    vtok = V.alloc()
    xb = V.alloc(8); dsk = V.alloc(8); b2v = V.alloc(8)
    E(f"""
    s_lshl_b32 {s_t0}, {s_s}, 6
    v_lshl_add_u32 {t[0]}, {r_}, 1, {s_t0}
    global_load_ushort {lre}, {t[0]}, s[48:49]
    global_load_ushort {lim}, {t[0]}, s[50:51]
    global_load_ushort {ldt}, {t[0]}, s[52:53]
    s_mul_i32 {s_t0}, {s_s}, 224
    s_lshl_b32 {s_t1}, {s_odd}, 5
    s_add_u32 {s_t1}, {s_t1}, {s_t0}
    v_lshl_add_u32 {t[1]}, {r_}, 1, {s_t1}
    global_load_ushort {wop[2][1]}, {t[1]}, s[56:57]
    global_load_ushort {wop[3][1]}, {t[1]}, s[56:57] offset:64
    global_load_ushort {wop[4][1]}, {t[1]}, s[56:57] offset:128
    s_mul_i32 {s_t1}, {s_odd}, 192
    s_sub_u32 {s_t1}, {s_t0}, {s_t1}
    s_add_u32 {s_t1}, {s_t1}, 192
    v_and_b32 {t[2]}, 15, {lane}
    v_lshl_add_u32 {t[2]}, {t[2]}, 1, {s_t1}
    global_load_ushort {wop[5][1]}, {t[2]}, s[56:57]
    v_mov_b32 {wop[0][1]}, 0
    v_mov_b32 {wop[1][1]}, 0
    v_and_b32 {t[3]}, 4, {r_}
    v_lshlrev_b32 {t[3]}, 2, {t[3]}
    v_lshrrev_b32 {t[4]}, 3, {r_}
    v_lshl_add_u32 {t[3]}, {t[4]}, 2, {t[3]}
    v_and_b32 {t[4]}, 3, {r_}
    v_add_u32 {vtok}, {t[3]}, {t[4]}
    s_lshl_b32 {s_t0}, {s_ct}, 6
    v_lshl_add_u32 {t[3]}, {h_}, 3, {s_t0}
    """)
    for j in range(4):
        e(f"global_load_dwordx2 {dsk[2*j:2*j+2]}, {t[3]}, s[54:55] offset:{16*j}")
        e(f"global_load_dwordx2 {b2v[2*j:2*j+2]}, {t[3]}, s[58:59] offset:{16*j}")
    vout = V.alloc()
    E(f"""
    s_lshl_b32 {s_t0}, {s_c}, 7
    s_lshl_b32 {s_t1}, {s_wm}, 5
    s_add_u32 {s_t0}, {s_t0}, {s_t1}
    v_add_u32 {t[4]}, {s_t0}, {vtok}
    v_lshl_add_u32 {t[4]}, {t[4]}, 10, {t[3]}
    v_lshlrev_b32 {vout}, 1, {t[4]}
    """)
    for j in range(4):
        e(f"buffer_load_dwordx2 {xb[2*j:2*j+2]}, {t[4]}, {sX}, 0 offen offset:{16*j}")
    P += dma_chunk(2)
    base0 = V.alloc()
    aX = [V.alloc() for _ in range(4)]; aB = [V.alloc() for _ in range(4)]
    aW1 = [[V.alloc() for _ in range(4)] for _ in range(4)]
    trb = V.alloc()
    E(f"""
    v_bfe_u32 {t[0]}, {r_}, 1, 3
    v_xor_b32 {t[0]}, {t[0]}, {h_}
    v_lshlrev_b32 {t[0]}, 4, {t[0]}
    v_lshl_add_u32 {base0}, {r_}, 7, {t[0]}
    v_bfe_u32 {t[1]}, {lane}, 2, 2
    v_mul_u32_u24 {t[1]}, 320, {t[1]}
    v_bfe_u32 {t[2]}, {lane}, 4, 1
    v_lshl_add_u32 {t[1]}, {t[2]}, 5, {t[1]}
    v_and_b32 {t[2]}, 3, {lane}
    v_lshl_add_u32 {trb}, {t[2]}, 3, {t[1]}
    v_lshl_add_u32 {t[3]}, {h_}, 11, {trb}
    """)
    for i in range(4):
        E(f"""
        s_xor_b32 {s_t0}, {s_wm}, {i}
        s_lshl_b32 {s_t1}, {s_t0}, 5
        v_xor_b32 {t[0]}, {s_t1}, {base0}
        v_add_u32 {aX[i]}, {s_wm4k}, {t[0]}
        v_add_u32 {aB[i]}, {BU(0)*U}, {t[0]}
        s_lshl_b32 {s_t1}, {s_t0}, 12
        s_add_u32 {s_t1}, {s_t1}, {W1U(0)*U}
        v_add_u32 {aW1[i][0]}, {s_t1}, {t[3]}
        """)
        for tt_ in range(1, 4): e(f"v_xor_b32 {aW1[i][tt_]}, {64*tt_}, {aW1[i][0]}")
    sel = V.alloc(4)
    E(f"""
    v_lshrrev_b32 {t[0]}, 2, {lane}
    v_xor_b32 {t[0]}, {t[0]}, {lane}
    v_and_b32 {t[0]}, 4, {t[0]}
    v_cmp_eq_u32 vcc, 0, {t[0]}
    v_mov_b32 {t[1]}, 0x3f803f80
    v_cndmask_b32 {sel[0]}, 0, {t[1]}, vcc
    v_mov_b32 {sel[1]}, {sel[0]}
    v_mov_b32 {sel[2]}, {sel[0]}
    v_mov_b32 {sel[3]}, {sel[0]}
    """)
    E(f"""
    v_mov_b32 {zz[0]}, 0
    v_mov_b32 {zz[1]}, 0
    v_min_u32 {t[0]}, 223, v0
    v_lshlrev_b32 {t[0]}, 3, {t[0]}
    v_add_u32 {t[0]}, {SCR_EX}, {t[0]}
    """)
    e(f"ds_write_b64 {t[0]}, {zz}", None, ('w', 'ex', False))
    V.release(zz)
    lam = V.alloc(2); l16 = V.alloc(2); l128 = V.alloc(2); l1024 = V.alloc(2); lsg = V.alloc(2); G = V.alloc(2)
    def bf16r(d, s): return f"v_cvt_pk_bf16_f32 {d}, {s}, {s}\nv_lshlrev_b32 {d}, 16, {d}"
    def csq(d, s):
        return f"v_mul_f32 {d[0]}, {s[1]}, {s[1]}\nv_fma_f32 {d[0]}, {s[0]}, {s[0]}, -{d[0]}\nv_mul_f32 {d[1]}, {s[0]}, {s[1]}\nv_add_f32 {d[1]}, {d[1]}, {d[1]}"
    def cmul(d, a, b):
        return f"v_mul_f32 {d[0]}, {a[1]}, {b[1]}\nv_fma_f32 {d[0]}, {a[0]}, {b[0]}, -{d[0]}\nv_mul_f32 {d[1]}, {a[0]}, {b[1]}\nv_fma_f32 {d[1]}, {a[1]}, {b[0]}, {d[1]}"
    def cfma(d, a, b, c):
        return f"v_fma_f32 {d[0]}, {a[0]}, {b[0]}, {c[0]}\nv_fma_f32 {d[1]}, {a[0]}, {b[1]}, {c[1]}\nv_fma_f32 {d[0]}, -{a[1]}, {b[1]}, {d[0]}\nv_fma_f32 {d[1]}, {a[1]}, {b[0]}, {d[1]}"
    p0 = V.alloc(2); p1 = V.alloc(2); p2 = V.alloc(2)
    E(f"""
    v_lshlrev_b32 {lre}, 16, {lre}
    v_lshlrev_b32 {lim}, 16, {lim}
    v_lshlrev_b32 {ldt}, 16, {ldt}
    v_mul_f32 {ldt}, {f32(1.4426950408889634)}, {ldt}
    v_exp_f32 {ldt}, {ldt}
    {bf16r(ldt, ldt)}
    v_mul_f32 {t[0]}, {ldt}, {lre}
    v_mul_f32 {t[1]}, {ldt}, {lim}
    v_mul_f32 {t[0]}, {f32(1.4426950408889634)}, {t[0]}
    v_mul_f32 {t[1]}, 0.15915494, {t[1]}
    v_exp_f32 {t[0]}, {t[0]}
    v_rndne_f32 {t[2]}, {t[1]}
    v_sub_f32 {t[1]}, {t[1]}, {t[2]}
    v_cos_f32 {t[2]}, {t[1]}
    v_sin_f32 {t[3]}, {t[1]}
    v_mul_f32 {lam[0]}, {t[0]}, {t[2]}
    v_mul_f32 {lam[1]}, {t[0]}, {t[3]}
    v_mul_f32 {t[0]}, {lre}, {lre}
    v_fma_f32 {t[0]}, {lim}, {lim}, {t[0]}
    v_rcp_f32 {t[0]}, {t[0]}
    v_add_f32 {t[1]}, -1.0, {lam[0]}
    v_add_f32 {t[0]}, {t[0]}, {t[0]}
    v_mul_f32 {t[2]}, {t[1]}, {lre}
    v_fma_f32 {t[2]}, {lam[1]}, {lim}, {t[2]}
    v_mul_f32 {t[3]}, {lam[1]}, {lre}
    v_fma_f32 {t[3]}, -{t[1]}, {lim}, {t[3]}
    v_mul_f32 {G[0]}, {t[2]}, {t[0]}
    v_mul_f32 {G[1]}, -{t[3]}, {t[0]}
    v_sub_f32 {lam[1]}, 0, {lam[1]}
    {csq(p0, lam)}
    {csq(p1, p0)}
    {csq(p0, p1)}
    {csq(l16, p0)}
    {csq(p0, l16)}
    {csq(p1, p0)}
    {csq(l128, p1)}
    v_cmp_eq_u32 vcc, 1, {h_}
    v_cndmask_b32 {p2[0]}, 1.0, {l16[0]}, vcc
    v_cndmask_b32 {p2[1]}, 0, {l16[1]}, vcc
    s_bitcmp1_b32 {s_wm}, 0
    s_cselect_b64 vcc, -1, 0
    v_cndmask_b32 {p0[0]}, 1.0, {p0[0]}, vcc
    v_cndmask_b32 {p0[1]}, 0, {p0[1]}, vcc
    {cmul(l1024, p2, p0)}
    s_bitcmp1_b32 {s_wm}, 1
    s_cselect_b64 vcc, -1, 0
    v_cndmask_b32 {p1[0]}, 1.0, {p1[0]}, vcc
    v_cndmask_b32 {p1[1]}, 0, {p1[1]}, vcc
    {cmul(lsg, l1024, p1)}
    {csq(p0, l128)}
    {csq(p1, p0)}
    {csq(l1024, p1)}
    """.replace(f"v_mul_f32 {G[1]}, -{t[3]}, {t[0]}", f"v_mul_f32_e64 {G[1]}, -{t[3]}, {t[0]}"))
    V.release(lre, lim, ldt, p0, p1, p2)
    vw2 = V.alloc(); vc = V.alloc()
    E(f"""
    s_xor_b32 {s_t0}, {s_kq}, 3
    v_xor_b32 {t[0]}, {s_t0}, {vseg}
    v_and_b32 {t[1]}, 3, {lane}
    v_lshlrev_b32 {t[1]}, 4, {t[1]}
    v_lshl_add_u32 {t[0]}, {t[0]}, 6, {t[1]}
    v_lshrrev_b32 {t[1]}, 4, {lane}
    v_lshl_add_u32 {t[0]}, {t[1]}, 10, {t[0]}
    s_lshl_b32 {s_t0}, {s_nq}, 8
    s_add_u32 {s_t0}, {s_t0}, {s_wm4k}
    v_add_u32 {vw2}, {s_t0}, {t[0]}
    s_lshl_b32 {s_t0}, {s_odd}, 6
    v_xor_b32 {t[0]}, {s_t0}, {vcrow}
    s_lshl_b32 {s_t0}, {s_nq}, 17
    s_lshl_b32 {s_t1}, {s_kq}, 8
    s_add_u32 {s_t0}, {s_t0}, {s_t1}
    v_add_u32 {vc}, {s_t0}, {t[0]}
    """)
    V.release(vseg, vcrow)
    slot_units = lambda sl, withx=True: (list(range(XU(sl), XU(sl)+4)) if withx else []) + list(range(W1U(sl), W1U(sl)+4)) + [BU(sl), BU(sl)+1]
    unit = list(range(30, 38)) + slot_units(2) + slot_units(0) + slot_units(1, False)
    unit += unit[:44 - len(unit)]
    TRU = XU(1)
    def dma_item(k):
        o = []
        if k < 28:
            v, a = divmod(k, 7)
            o += L(f"""
            s_xor_b32 {s_so}, {s_s}, {v}
            s_and_b32 {s_so2}, {s_so}, 1
            s_mul_i32 {s_so}, {s_so}, {112*1024}
            s_mul_i32 {s_so2}, {s_so2}, {16*1024 if a < 6 else (-96*1024) & 0xffffffff}
            s_add_u32 {s_so}, {s_so}, {s_so2}
            s_add_u32 {s_so}, {s_so}, {a*16384}
            s_add_u32 m0, {s_wm1k}, {unit[k]*U}
            """)
            o.append(I(f"buffer_load_dwordx4 {vw2}, {sW2}, {s_so} offen lds", f'i{k}', ('w', unit[k], False)))
        else:
            u, blk = divmod(k - 28, 4)
            o += L(f"""
            s_xor_b32 {s_so}, {s_kq}, {u ^ 3}
            s_lshl_b32 {s_so}, {s_so}, 15
            s_lshr_b32 {s_so2}, {s_nq}, 1
            s_xor_b32 {s_so2}, {s_so2}, {blk & 1}
            s_lshl_b32 {s_so2}, {s_so2}, 7
            s_add_u32 {s_so}, {s_so}, {s_so2}
            s_add_u32 m0, {s_wm1k}, {unit[k]*U}
            """)
            o.append(I(f"buffer_load_dwordx4 {vc}, {sCim if blk >= 2 else sCre}, {s_so} offen lds", f'i{k}', ('w', unit[k], False)))
        return o
    stamp('prolog')
    acc = [V.alloc(16) for _ in range(6)]
    cs = [V.alloc(4) for _ in range(6)]; rsum = V.alloc(4); ssq = [V.alloc(), V.alloc()]
    xf = [V.alloc(4), V.alloc(4)]
    wf = [[A.alloc(4) for _ in range(6)] for _ in range(2)]
    E(f"v_mov_b32 {ssq[0]}, 0\nv_mov_b32 {ssq[1]}, 0")
    def reads(n):
        ch, i = divmod(n, 4); sl = ch % 3; b = n & 1; o = []
        o.append(I(f"ds_read_b128 {xf[b]}, {aX[i]} offset:{XU(sl)*U}", None, ('r', list(range(XU(sl), XU(sl)+4)), True)))
        o.append(I(f"ds_read_b128 {wf[b][0]}, {aB[i]} offset:{sl*2*U}", None, ('r', BU(sl), False)))
        o.append(I(f"ds_read_b128 {wf[b][1]}, {aB[i]} offset:{sl*2*U+U}", None, ('r', BU(sl)+1, False)))
        for tt_ in range(4):
            for rd in range(2):
                o.append(I(f"ds_read_b64_tr_b16 {wf[b][2+tt_][2*rd:2*rd+2]}, {aW1[i][tt_]} offset:{sl*4*U+rd*1024}", None, ('r', list(range(W1U(sl), W1U(sl)+4)), False)))
        return o
    def mains(n):
        ch, i = divmod(n, 4); b = n & 1; o = []
        c0 = lambda a: '0' if n == 0 else str(a)
        for k in range(2): o.append([I(f"v_mfma_f32_32x32x16_bf16 {acc[k]}, {xf[b]}, {wf[b][k]}, {c0(acc[k])}")])
        for k in range(2, 6): o.append([I(f"v_mfma_f32_32x32x16_bf16 {acc[k]}, {wf[b][k]}, {xf[b]}, {c0(acc[k])}")])
        o[0] += [I(f"v_mfma_f32_16x16x32_bf16 {rsum}, {sel}, {xf[b]}, {c0(rsum)}")]
        if i == 0:
            for k in range(6): o[k] += [I(f"v_mfma_f32_16x16x32_bf16 {cs[k]}, {sel}, {wf[b][k]}, {c0(cs[k])}")]
        o[5] += [I(f"v_dot2c_f32_bf16 {ssq[q&1]}, {xf[b][q]}, {xf[b][q]}") for q in range(4)]
        return o
    def weave(groups, fill, first=0):
        o = []; n = len(groups); k = 0
        per = -(-len(fill) // max(1, n - first - 1)) if fill else 0
        for gi, g in enumerate(groups):
            o += g
            if gi >= first: o += fill[k:k+per]; k += per
        return o + fill[k:]
    vann = V.alloc(); vannv = V.alloc()
    P.append(WaitVM('c0')); e("s_barrier")
    stamp('c0')
    P += reads(0)
    late = []
    for n in range(32):
        ch, i = divmod(n, 4)
        if i == 3:
            P.append(WaitLG())
            if ch < 7: P.append(WaitVM(f'c{ch+1}'))
            e("s_barrier")
            stamp(f'bar{ch}')
            if ch + 3 < 8: late += dma_chunk(ch + 3)
            if ch == 1:
                late += L(f"""
                s_lshl_b32 {s_t0}, {s_c}, 4
                s_add_u32 {s_t0}, {s_t0}, {s_s}
                v_mov_b32 {t[0]}, {s_t0}
                v_cmp_eq_u32 vcc, 0, v0
                v_mov_b32 {t[1]}, 0x7ffffff0
                v_cndmask_b32 {t[0]}, {t[1]}, {t[0]}, vcc
                s_or_b32 {s_t1}, {s_xcc}, 16
                v_mov_b32 {t[1]}, {s_t1}
                buffer_store_byte {t[1]}, {t[0]}, {sDbg}, 0 offen sc0 sc1
                """)
            if ch == 4:
                for k in range(0, 8): late += dma_item(k)
            if ch == 5:
                for k in range(8, 18): late += dma_item(k)
            if ch == 6:
                late += L(f"""
                v_and_b32 {t[0]}, 15, {lane}
                s_lshl_b32 {s_t0}, {s_c}, 4
                v_add_u32 {t[1]}, {s_t0}, {t[0]}
                v_lshl_add_u32 {t[0]}, {t[0]}, 4, {s_s}
                v_cmp_gt_u32 vcc, 32, {lane}
                v_cndmask_b32 {vann}, {t[0]}, {t[1]}, vcc
                buffer_load_ubyte {vannv}, {vann}, {sDbg}, 0 offen sc0 sc1
                """)
                for k in range(18, 28): late += dma_item(k)
            if ch == 7:
                for k in range(28, 34): late += dma_item(k)
        rd = reads(n + 1) if n < 31 else []
        take = late[:24 if n < 31 else len(late)]; late = late[len(take):]
        g = mains(n)
        o = []; k = 0; q = 0; per = -(-len(take) // 6)
        for gi in range(6):
            o += g[gi] + rd[k:k+3 if gi == 0 else k+2]; k += 3 if gi == 0 else 2
            o += take[q:q+per]; q += per
        P += o
    stamp('p1end')
    V.release(aX, aB, aW1, vx, vb, vw1, xf, sel)
    A.release(wf)
    E(f"v_lshlrev_b32 {t[0]}, 4, {r_}\nv_add_u32 {t[0]}, {SCR_CS}, {t[0]}\ns_lshl_b32 {s_t0}, {s_wm}, 2\nv_add_u32 {t[1]}, {s_t0}, {t[0]}")
    for k in range(6): e(f"ds_write_b32 {t[1]}, {cs[k][0]} offset:{k*512}", None, ('w', 'cs', False))
    P.append(WaitLG()); e("s_barrier")
    for k in range(6): e(f"ds_read_b128 {cs[k]}, {t[0]} offset:{k*512}", None, ('r', 'cs', False))
    m1, r1, S, K12 = V.alloc(), V.alloc(), V.alloc(2), V.alloc(2)
    topm, tops = V.alloc(2), V.alloc(2)
    mu, var, sd = t[2], t[3], t[4]
    E(f"""
    v_add_f32 {ssq[0]}, {ssq[0]}, {ssq[1]}
    v_mov_b32 {ssq[1]}, {ssq[0]}
    v_permlane32_swap_b32 {ssq[0]}, {ssq[1]}
    v_mul_f32 {mu}, {f32(1/512)}, {rsum[0]}
    v_add_f32 {ssq[0]}, {ssq[0]}, {ssq[1]}
    v_mul_f32 {var}, {f32(1/512)}, {ssq[0]}
    v_fma_f32 {var}, -{mu}, {mu}, {var}
    v_max_f32 {var}, 0, {var}
    {bf16r(m1, mu)}
    {bf16r(sd, var)}
    v_add_f32 {sd}, {f32(1e-5)}, {sd}
    {bf16r(sd, sd)}
    v_sqrt_f32 {sd}, {sd}
    {bf16r(sd, sd)}
    v_rcp_f32 {r1}, {sd}
    v_sub_f32 {t[5]}, {mu}, {m1}
    v_mul_f32 {t[5]}, {t[5]}, {r1}
    {bf16r(t[5], t[5])}
    v_fma_f32 {t[5]}, {t[5]}, {sd}, {m1}
    v_mul_f32 {var}, {var}, {r1}
    v_mul_f32 {var}, {var}, {r1}
    {bf16r(var, var)}
    v_add_f32 {var}, {f32(1e-5)}, {var}
    {bf16r(var, var)}
    v_sqrt_f32 {var}, {var}
    {bf16r(var, var)}
    v_mul_f32 {S[0]}, {sd}, {var}
    v_rcp_f32 {t[6]}, {S[0]}
    v_cmp_eq_u32 vcc, 0, {h_}
    {bf16r(mu, t[5])}
    v_sub_f32 {var}, {t[5]}, {mu}
    v_cndmask_b32 {mu}, {var}, {mu}, vcc
    v_cvt_pk_bf16_f32 {topm[0]}, -{mu}, -{mu}
    {bf16r(mu, S[0])}
    v_sub_f32 {var}, {S[0]}, {mu}
    v_cndmask_b32 {mu}, {var}, {mu}, vcc
    v_cvt_pk_bf16_f32 {topm[1]}, {mu}, 0
    v_cndmask_b32 {mu}, 0, {m1}, vcc
    v_cvt_pk_bf16_f32 {tops[0]}, -{mu}, -{mu}
    v_mov_b32 {tops[1]}, 0
    v_mul_f32 {K12[0]}, {f32(-2.302208198)}, {t[6]}
    v_mul_f32 {t[7]}, {t[6]}, {t[6]}
    v_mul_f32 {t[7]}, {f32(0.044715)}, {t[7]}
    v_mul_f32 {K12[1]}, {K12[0]}, {t[7]}
    s_lshl_b32 {s_t0}, {s_wm}, 7
    s_add_u32 {s_t0}, {s_t0}, {SCR_R1}
    v_lshl_add_u32 {t[5]}, {vtok}, 2, {s_t0}
    v_lshl_add_u32 {t[6]}, {h_}, 6, {s_t0}
    """)
    e(f"ds_write_b32 {t[5]}, {r1}", None, ('w', 'r1', True))
    rt = V.alloc(16)
    for j in range(4): e(f"ds_read_b128 {rt[4*j:4*j+4]}, {t[6]} offset:{16*j}", None, ('r', 'r1', True))
    for k in range(6):
        c = cs[k]
        E(f"""
        v_add_f32 {c[0]}, {c[0]}, {c[1]}
        v_add_f32 {c[2]}, {c[2]}, {c[3]}
        v_add_f32 {c[0]}, {c[0]}, {c[2]}
        {bf16r(c[1], c[0])}
        v_sub_f32 {c[1]}, {c[0]}, {c[1]}
        v_cvt_pk_bf16_f32 {wop[k][0]}, {c[0]}, {c[1]}
        """)
    for k in range(2): e(f"v_mfma_f32_32x32x8_bf16 {acc[k]}, {tops}, {wop[k]}, {acc[k]}")
    for k in range(2, 6): e(f"v_mfma_f32_32x32x8_bf16 {acc[k]}, {wop[k]}, {topm}, {acc[k]}")
    V.release(cs, rsum, ssq, topm, tops, wop)
    P.append(Opaque(f"""
  s_mov_b32 {s_t2}, {SPIN}
L_ann:
  v_cmp_eq_u32 vcc, 0, {vannv}
  s_nop 4
  s_cbranch_vccz L_ann_ok
  s_sub_u32 {s_t2}, {s_t2}, 1
  s_cbranch_scc1 L_ann_ok
  buffer_load_ubyte {vannv}, {vann}, {sDbg}, 0 offen sc0 sc1
  s_waitcnt vmcnt(0)
  s_branch L_ann
L_ann_ok:
  s_or_b32 {s_t1}, {s_xcc}, 16
  v_cmp_ne_u32 vcc, {s_t1}, {vannv}
  s_nop 4
  s_cmp_eq_u32 vcc_lo, 0
  s_cselect_b32 {s_fast}, {0 if opt.get('noFast') else 1}, 0
""", rd=f"{vannv} {vann}", wr=f"{vannv} vcc"))
    V.release(vann, vannv)
    are, aim = acc[0], acc[1]
    for i in range(16):
        e(f"v_mul_f32 {are[i]}, {rt[i]}, {are[i]}")
        e(f"v_mul_f32_e64 {aim[i]}, -{rt[i]}, {aim[i]}")
    V.release(rt)
    Ea, Eb = V.alloc(2), V.alloc(2)
    cur = (are[0], aim[0])
    for i in range(1, 16):
        d = Ea if i & 1 else Eb
        E(cfma(d, cur, lam, (are[i], aim[i]))); cur = d
    Eo = cur
    E(f"""
    s_lshl_b32 {s_t0}, {s_wm}, 9
    s_add_u32 {s_t0}, {s_t0}, {SCR_EX}
    v_lshl_add_u32 {t[0]}, {lane}, 3, {s_t0}
    """)
    e(f"ds_write_b64 {t[0]}, {Eo} offset:{7*256}", None, ('w', 'ex', False))
    P.append(WaitLG()); e("s_barrier")
    eq = V.alloc(16)
    for q in range(7): e(f"ds_read_b64 {eq[2*q:2*q+2]}, {t[0]} offset:{q*256}", None, ('r', 'ex', False))
    for q in range(1, 7): E(cfma(eq[2*q:2*q+2], eq[2*q-2:2*q], l16, eq[2*q:2*q+2]))
    Pfx = V.alloc(2)
    E(f"v_mov_b32 {Pfx[0]}, {eq[12]}\nv_mov_b32 {Pfx[1]}, {eq[13]}")
    E(cfma(Eo, Pfx, l16, Eo))
    e(f"buffer_store_dwordx2 {Eo}, {veo}, {sE}, 0 offen sc0 sc1")
    stamp('ssm1')
    hown = [V.alloc(4) for _ in range(11)]
    vh = V.alloc()
    E(f"""
    s_lshl_b32 {s_t0}, {s_c}, 2
    s_add_u32 {s_t0}, {s_t0}, {s_wm}
    s_mul_i32 {s_t0}, {s_t0}, {16*11*1024}
    v_lshl_add_u32 {vh}, {lane}, 4, {s_t0}
    s_mul_i32 {s_so}, {s_s}, {11*1024}
    """)
    g0, g1 = V.alloc(8), V.alloc(8)
    def gelu8(a, dst):
        o = []
        for q in range(4): o.append(f"v_pk_mul_f32 {g0[2*q:2*q+2]}, {a[2*q:2*q+2]}, {a[2*q:2*q+2]}")
        for q in range(4): o.append(f"v_pk_fma_f32 {g0[2*q:2*q+2]}, {g0[2*q:2*q+2]}, {K12}, {K12} op_sel:[0,1,0] op_sel_hi:[1,1,0]")
        for q in range(4): o.append(f"v_pk_mul_f32 {g0[2*q:2*q+2]}, {g0[2*q:2*q+2]}, {a[2*q:2*q+2]}")
        for q in range(8): o.append(f"v_exp_f32 {g0[q]}, {g0[q]}")
        for q in range(4): o.append(f"v_pk_fma_f32 {g0[2*q:2*q+2]}, {g0[2*q:2*q+2]}, {S}, {S} op_sel_hi:[1,0,0]")
        for q in range(8): o.append(f"v_rcp_f32 {g0[q]}, {g0[q]}")
        for q in range(4): o.append(f"v_pk_mul_f32 {g0[2*q:2*q+2]}, {g0[2*q:2*q+2]}, {a[2*q:2*q+2]}")
        for q in range(4): o.append(f"v_cvt_pk_bf16_f32 {dst[q]}, {g0[2*q]}, {g0[2*q+1]}")
        return '\n'.join(o)
    def hstore(f, tok=None):
        if f % 4 == 0 and f: e(f"s_add_u32 {s_so}, {s_so}, 4096")
        e(f"buffer_store_dwordx4 {hown[f]}, {vh}, {sWS}, {s_so} offen offset:{(f%4)*1024}", tok)
    for f in range(7):
        E(gelu8(acc[2 + f // 2][8*(f&1):8*(f&1)+8], hown[f])); hstore(f, 'hm')
    V.release(g0, g1, acc[2:], K12, S)
    lab = [0]
    def post_flag(tok, val):
        P.append(WaitVM(tok)); lab[0] += 1
        e(f"v_mov_b32 {t[7]}, {val}")
        P.append(Opaque(f"""
  s_cmp_eq_u32 {s_fast}, 1
  s_cbranch_scc1 L_pf{lab[0]}
  buffer_wbl2 sc1
  s_waitcnt vmcnt(0)
  buffer_store_dword {t[7]}, {vflag}, {sWS}, 0 offen sc0 sc1
  s_waitcnt vmcnt(0)
L_pf{lab[0]}:""", rd=f"{t[7]} {vflag}"))
        e(f"buffer_store_dword {t[7]}, {vflag}, {sWS}, {s_ffo} offen")
    s_ffo = 's82'
    E(f"s_cmp_eq_u32 {s_fast}, 1\ns_cselect_b32 {s_ffo}, 0, 0x7ff00000")
    def wait_flag(voff, val):
        lab[0] += 1
        P.append(Opaque(f"""
  s_mov_b32 {s_t2}, {SPIN}
L_wf{lab[0]}:
  buffer_load_dword {t[6]}, {voff}, {sWS}, 0 offen sc1
  s_waitcnt vmcnt(0)
  v_cmp_gt_u32 vcc, {val}, {t[6]}
  s_nop 4
  s_cbranch_vccz L_wg{lab[0]}
  s_sub_u32 {s_t2}, {s_t2}, 1
  s_cbranch_scc0 L_wf{lab[0]}
L_wg{lab[0]}:
  s_cmp_eq_u32 {s_fast}, 1
  s_cbranch_scc1 L_wh{lab[0]}
  buffer_inv sc1
  s_waitcnt vmcnt(0)
L_wh{lab[0]}:""", rd=f"{voff}", wr=f"{t[6]} vcc"))
    post_flag('hm', 1)
    stamp('gelu')
    acc2 = [A.alloc(16) for _ in range(3)] + [V.alloc(16)]
    for q in range(16):
        un = (lambda d, s: f"v_lshlrev_b32 {d}, 16, {s}") if q % 2 == 0 else (lambda d, s: f"v_and_b32 {d}, 0xffff0000, {s}")
        E(f"""
        {un(t[0], xb[q//2])}
        {un(t[1], dsk[q//2])}
        {un(t[2], b2v[q//2])}
        v_sub_f32 {t[3]}, {t[0]}, {m1}
        v_mul_f32 {t[1]}, {t[1]}, {r1}
        v_add_f32 {t[0]}, {t[0]}, {t[2]}
        v_fma_f32 {acc2[3][q]}, {t[3]}, {t[1]}, {t[0]}
        """)
    V.release(xb, dsk, b2v, m1, r1)
    for i in range(16):
        E(f"""
        v_mul_f32 {t[0]}, {G[1]}, {aim[i]}
        v_mul_f32 {aim[i]}, {G[0]}, {aim[i]}
        v_fma_f32 {aim[i]}, {G[1]}, {are[i]}, {aim[i]}
        v_fma_f32 {are[i]}, {G[0]}, {are[i]}, -{t[0]}
        """)
    chk = '\n'.join(f"  v_cmp_eq_u32 vcc, -1, {eq[q]}\n  s_nop 4\n  s_or_b64 s[84:85], s[84:85], vcc" for q in range(16))
    lds_ = '\n'.join(f"  buffer_load_dwordx2 {eq[2*q:2*q+2]}, {vei}, {sE}, 0 offen offset:{q*256} sc0 sc1" for q in range(8))
    P.append(Opaque(f"""
  s_mov_b32 {s_t2}, {SPIN}
L_car:
{lds_}
  s_mov_b64 s[84:85], 0
  s_waitcnt vmcnt(0)
{chk}
  s_cbranch_scc0 L_car_ok
  s_sub_u32 {s_t2}, {s_t2}, 1
  s_cbranch_scc0 L_car
L_car_ok:""", rd=f"{vei}", wr=f"{eq} vcc"))
    stamp('carry')
    for q in range(6, -1, -1): E(cfma(eq[2*q:2*q+2], eq[2*q+2:2*q+4], l128, eq[2*q:2*q+2]))
    E(f"""
    v_mov_b32 {eq[2]}, {eq[0]}
    v_mov_b32 {eq[3]}, {eq[1]}
    v_permlane32_swap_b32 {eq[0]}, {eq[2]}
    v_permlane32_swap_b32 {eq[1]}, {eq[3]}
    {cfma(eq[0:2], eq[2:4], l1024, eq[0:2])}
    {cfma(Pfx, eq[0:2], lsg, Pfx)}
    {cmul(Ea, Pfx, G)}
    """)
    cur = Ea
    for i in range(16):
        d = (are[i], aim[i]); E(cfma(d, cur, lam, d)); cur = d
    pk = eq
    for q in range(8):
        e(f"v_cvt_pk_bf16_f32 {pk[q]}, {are[2*q]}, {are[2*q+1]}")
    for q in range(8):
        e(f"v_cvt_pk_bf16_f32 {pk[8+q]}, {aim[2*q]}, {aim[2*q+1]}")
    tru = list(range(TRU, TRU + 4))
    E(f"""
    s_add_u32 {s_t0}, {s_wm4k}, {TRU*U}
    v_lshl_add_u32 {t[0]}, {r_}, 6, {s_t0}
    v_lshl_add_u32 {t[0]}, {h_}, 5, {t[0]}
    v_bfe_u32 {t[1]}, {lane}, 2, 2
    v_lshl_add_u32 {t[1]}, {h_}, 3, {t[1]}
    v_lshl_add_u32 {t[1]}, {t[1]}, 6, {s_t0}
    v_and_b32 {t[2]}, 1, {lane}
    v_lshl_add_u32 {t[1]}, {t[2]}, 5, {t[1]}
    v_bfe_u32 {t[2]}, {lane}, 4, 1
    v_lshl_add_u32 {t[1]}, {t[2]}, 4, {t[1]}
    v_bfe_u32 {t[2]}, {lane}, 1, 1
    v_lshl_add_u32 {t[1]}, {t[2]}, 3, {t[1]}
    """)
    for q in range(4): e(f"ds_write_b128 {t[0]}, {pk[4*q:4*q+4]} offset:{(q&1)*16 + (q>>1)*2048}", None, ('w', tru, True))
    for f in range(4):
        for rd in range(2): e(f"ds_read_b64_tr_b16 {hown[7+f][2*rd:2*rd+2]}, {t[1]} offset:{f*1024 + rd*256}", None, ('r', tru, True))
    for f in range(7, 11): hstore(f, 'hs')
    post_flag('hs', 2)
    V.release(eq, Pfx, Ea, Eb, acc[0], acc[1], lam, l16, l128, l1024, lsg, G, vei, veo)
    stamp('ssm2')
    vpH, vpP = V.alloc(), V.alloc()
    E(f"""
    v_min_u32 {t[0]}, 2, {lane}
    v_add_u32 {t[0]}, 1, {t[0]}
    v_xor_b32 {t[1]}, {s_s}, {t[0]}
    v_lshlrev_b32 {t[0]}, 2, {t[0]}
    v_xor_b32 {t[0]}, {s_s}, {t[0]}
    s_lshl_b32 {s_t0}, {s_c}, 13
    s_lshl_b32 {s_t1}, {s_wm}, 7
    s_add_u32 {s_t0}, {s_t0}, {s_t1}
    s_add_u32 {s_t0}, {s_t0}, {FB}
    v_lshl_add_u32 {vpH}, {t[1]}, 9, {s_t0}
    v_lshl_add_u32 {vpP}, {t[0]}, 9, {s_t0}
    """)
    aW2 = [[V.alloc() for _ in range(3)] for _ in range(4)]
    aC = [[V.alloc() for _ in range(3)] for _ in range(4)]
    E(f"v_lshl_add_u32 {t[0]}, {h_}, 10, {trb}")
    for u in range(4):
        e(f"v_xor_b32 {aW2[u][0]}, {64*u}, {t[0]}"); e(f"v_xor_b32 {aC[u][0]}, {32*u}, {base0}")
        for w in (1, 2):
            e(f"v_add_u32 {aW2[u][w]}, {65536*w}, {aW2[u][0]}"); e(f"v_add_u32 {aC[u][w]}, {65536*w}, {aC[u][0]}")
    hf = [hown] + [[A.alloc(4) for _ in range(11)] for _ in range(3)]
    wait_flag(vpH, 2)
    stamp('hflag')
    for v in range(1, 4):
        E(f"s_xor_b32 {s_so}, {s_s}, {v}\ns_mul_i32 {s_so}, {s_so}, {11*1024}")
        for f in range(11):
            if f % 4 == 0 and f: e(f"s_add_u32 {s_so}, {s_so}, 4096")
            e(f"buffer_load_dwordx4 {hf[v][f]}, {vh}, {sWS}, {s_so} offen offset:{(f%4)*1024} sc1")
    w2f = [[A.alloc(4) for _ in range(4)] for _ in range(2)]
    def reads2(k):
        b = k & 1; w, off = divmod(unit[k] * U, 65536); o = []
        for q in range(4):
            if k < 28:
                for rd in range(2): o.append(I(f"ds_read_b64_tr_b16 {w2f[b][q][2*rd:2*rd+2]}, {aW2[q][w]} offset:{off + rd*2048}", None, ('r', unit[k], False)))
            else:
                o.append(I(f"ds_read_b128 {w2f[b][q]}, {aC[q][w]} offset:{off}", None, ('r', unit[k], False)))
        return o
    def mains2(k):
        b = k & 1; o = []
        for q in range(4):
            if k < 28:
                v, a = divmod(k, 7); ac = acc2[q]; hh = hf[v][a]
                c0 = '0' if (k == 0 and q < 3) else str(ac)
            else:
                u, blk = divmod(k - 28, 4); ac = acc2[u]; i = (blk & 1) * 4 + q
                hh = hf[i >> 1][7 + (blk >> 1) * 2 + (i & 1)]; c0 = str(ac)
            o.append([I(f"v_mfma_f32_32x32x16_bf16 {ac}, {w2f[b][q]}, {hh}, {c0}")])
        return o
    vp = V.alloc()
    E(f"""
    s_lshl_b32 {s_t0}, {s_c}, 6
    s_add_u32 {s_t0}, {s_t0}, {s_wm}
    s_mul_i32 {s_t0}, {s_t0}, {12*1024}
    s_add_u32 {s_t0}, {s_t0}, {PB}
    v_lshl_add_u32 {vp}, {lane}, 4, {s_t0}
    """)
    P.append(WaitVM('i33')); e("s_barrier")
    P += reads2(0)
    late = []
    for k in range(44):
        if k == 10:
            P.append(WaitLG()); e("s_barrier")
            for q in range(34, 44): late += dma_item(q)
        if k == 33:
            P.append(WaitVM('i43')); e("s_barrier")
        if k in (32, 36, 40):
            u = (k - 32) // 4
            late += L(f"s_mul_i32 {s_so}, {s_s}, {4*12*1024}\ns_add_u32 {s_so}, {s_so}, {u*4096}\ns_nop 7")
            late += [I(f"buffer_store_dwordx4 {acc2[u][4*q:4*q+4]}, {vp}, {sWS}, {s_so} offen offset:{q*1024}", f'p{u}') for q in range(4)]
        rd = reads2(k + 1) if k < 43 else []
        take = late[:16]; late = late[len(take):]
        g = mains2(k); o = []
        pr = -(-len(rd) // 3); pt = -(-len(take) // 4)
        for gi in range(4): o += g[gi] + rd[gi*pr:(gi+1)*pr] + take[gi*pt:(gi+1)*pt]
        P += o
    stamp('p2end')
    post_flag('p2', 5)
    wait_flag(vpP, 5)
    stamp('pflag')
    pin = [V.alloc(16) for _ in range(3)]
    for u in range(3):
        E(f"s_xor_b32 {s_so}, {s_s}, {(u ^ 3) << 2}\ns_mul_i32 {s_so}, {s_so}, {4*12*1024}\ns_add_u32 {s_so}, {s_so}, {u*4096}")
        for q in range(4): e(f"buffer_load_dwordx4 {pin[u][4*q:4*q+4]}, {vp}, {sWS}, {s_so} offen offset:{q*1024} sc1")
    o2 = acc2[3]
    for u in range(3):
        for q in range(8): e(f"v_pk_add_f32 {o2[2*q:2*q+2]}, {o2[2*q:2*q+2]}, {pin[u][2*q:2*q+2]}")
    for j in range(4): e(f"buffer_store_dwordx4 {o2[4*j:4*j+4]}, {vout}, {sOut}, 0 offen offset:{32*j}")
    stamp('end')
    if opt.get('stamps'):
        P.append(WaitVM(None)); stamp('drain')
        P.append(Opaque(f"  s_memrealtime s[80:81]\n  s_waitcnt lgkmcnt(0)\n  v_writelane_b32 {vstamp}, s80, 62\n  v_writelane_b32 {vstamp}, {s_fast}, 63", pad=False))
        E(f"""
        s_lshl_b32 {s_t0}, s2, 10
        s_add_u32 {s_t0}, {s_t0}, {TB}
        v_lshl_add_u32 {t[0]}, v0, 2, {s_t0}
        buffer_store_dword {vstamp}, {t[0]}, {sWS}, 0 offen
        """)
    body = finalize(P, verbose=opt.get('verbose'))
    head = open(os.path.join(os.path.dirname(os.path.abspath(__file__)), '..', 'cdna_kernels', NAME[:-7] + '.s.ref')).read().split('; Override launch')[0]
    txt = head + (f"; stamps: {chr(44).join(stamps)}\n" if stamps else "") + f"""; generated by gen/gen1.py {opt}
; @launch grid=(256,1,1) block=(256,1,1) lds=163840
.amdgcn_target "amdgcn-amd-amdhsa--gfx950"
.text
.globl {NAME}
.p2align 8
.type {NAME},@function
{NAME}:
{body}L_end:
  s_endpgm
.section .rodata,"a"
.p2align 6
.amdhsa_kernel {NAME}
  .amdhsa_next_free_vgpr 512
  .amdhsa_next_free_sgpr 96
  .amdhsa_accum_offset 256
  .amdhsa_group_segment_fixed_size 0
  .amdhsa_kernarg_size 136
  .amdhsa_user_sgpr_count 2
  .amdhsa_user_sgpr_kernarg_segment_ptr 1
  .amdhsa_system_sgpr_workgroup_id_x 1
.end_amdhsa_kernel
"""
    if opt.get('verbose'): print('vgpr high', V.high, 'agpr high', A.high, 'stamps', stamps)
    return txt, stamps

if __name__ == '__main__':
    opt = {'verbose': True}
    out = None
    for a in sys.argv[1:]:
        if a.startswith('-o'): out = a[2:]
        else:
            k, _, v = a.partition('='); opt[k] = v if v else True
    txt, stamps = gen(opt)
    open(out or 'cdna_kernels/' + NAME[:-7] + '.s', 'w').write(txt)
```
